```python
import torch

def _softmax(x, axis=-1):
    return torch.softmax(x, dim=axis)
def _gelu(x):
    return torch.nn.functional.gelu(x, approximate="tanh")
def _silu(x):
    return torch.nn.functional.silu(x)
def _sigmoid(x):
    return torch.sigmoid(x)
def _layernorm(x, axis=-1, eps=1e-5):
    m = x.mean(dim=axis, keepdim=True)
    v = x.var(dim=axis, keepdim=True, unbiased=False)
    return (x - m) / torch.sqrt(v + eps)
def _scatter_add(tgt, idx, src, axis=0):
    return tgt.clone().index_add_(axis, idx, src)
def _segment_sum(src, seg, n):
    out = torch.zeros((n,) + src.shape[1:], dtype=src.dtype)
    return out.index_add_(0, seg, src)
def _pad(x, pw):
    flat = tuple(v for pair in reversed(pw) for v in pair)
    return torch.nn.functional.pad(x, flat)

kernel_name = 'interleave_layers__grouped_kv_mqa__sliding_block__prompt'

def setup_inputs():

    _w = (lambda a: (lambda t: t.to(torch.bfloat16) if t.is_floating_point() else t)(torch.as_tensor(a)))
    def _A_setup():
        B, S, D, H = 1, 2048, 448, 16
        Dh = D // H
        return {
            "x": _w((lambda *s: torch.randn(*s, dtype=torch.bfloat16) * 0.05)(B, S, D)),
            "wq": _w((lambda *s: torch.randn(*s, dtype=torch.bfloat16) * 0.05)(D, H * Dh)),
            "wk": _w((lambda *s: torch.randn(*s, dtype=torch.bfloat16) * 0.05)(D, Dh)),
            "wv": _w((lambda *s: torch.randn(*s, dtype=torch.bfloat16) * 0.05)(D, Dh)),
            "wo": _w((lambda *s: torch.randn(*s, dtype=torch.bfloat16) * 0.05)(H * Dh, D)),
        }
    _A_in = _A_setup()

    def _B_setup():
        B, S, D = 1, 2048, 448
        return {
            "x": _w((lambda *s: torch.randn(*s, dtype=torch.bfloat16) * 0.05)(B, S, D)),
            "wqkv": _w((lambda *s: torch.randn(*s, dtype=torch.bfloat16) * 0.05)(D, 3 * D)),
            "wo": _w((lambda *s: torch.randn(*s, dtype=torch.bfloat16) * 0.05)(D, D)),
        }
    _B_in = _B_setup()

    return {
        "A_x": _A_in["x"],
        "A_wq": _A_in["wq"],
        "A_wk": _A_in["wk"],
        "A_wv": _A_in["wv"],
        "A_wo": _A_in["wo"],
        "B_x": _B_in["x"],
        "B_wqkv": _B_in["wqkv"],
        "B_wo": _B_in["wo"],
    }

def reference(A_x, A_wq, A_wk, A_wv, A_wo, B_x, B_wqkv, B_wo):
    def _A_ref(x, wq, wk, wv, wo):
        B, S, D = x.shape
        H = 16
        Dh = D // H
        q = (lambda x, *d: x.permute(*d))((x @ wq).reshape(B, S, H, Dh), 0, 2, 1, 3)
        k = x @ wk
        v = x @ wv
        scores = torch.einsum("bhqd,bkd->bhqk", q, k) * (Dh ** -0.5)
        p = _softmax(scores, axis=-1)
        o = torch.einsum("bhqk,bkd->bhqd", p, v)
        return (lambda x, *d: x.permute(*d))(o, 0, 2, 1, 3).reshape(B, S, H * Dh) @ wo

    def _B_ref(x, wqkv, wo):
        B, S, D = x.shape
        H = 16; Dh = D // H; W = 256
        qkv = (lambda x, *d: x.permute(*d))((x @ wqkv).reshape(B, S, 3, H, Dh), 2, 0, 3, 1, 4)
        q, k, v = qkv[0], qkv[1], qkv[2]
        scores = torch.einsum("bhqd,bhkd->bhqk", q, k) * (Dh ** -0.5)
        idx = torch.arange(S)
        mask = (idx[:, None] - idx[None, :] >= 0) & (idx[:, None] - idx[None, :] < W)
        scores = torch.where(mask[None, None], scores, -1e9)
        p = _softmax(scores, axis=-1)
        o = torch.einsum("bhqk,bhkd->bhqd", p, v)
        return (lambda x, *d: x.permute(*d))(o, 0, 2, 1, 3).reshape(B, S, D) @ wo

    x = A_x
    x = x + _A_ref(_layernorm(x, axis=-1), A_wq, A_wk, A_wv, A_wo)
    x = x + _B_ref(_layernorm(x, axis=-1), B_wqkv, B_wo)
    x = x + _A_ref(_layernorm(x, axis=-1), A_wq, A_wk, A_wv, A_wo)
    x = x + _B_ref(_layernorm(x, axis=-1), B_wqkv, B_wo)
    return x
```

```python
import re

REG_RE = re.compile(r'\b([vsa])(?:(\d+)|\[(\d+):(\d+)\])')

def regs_of(op):
    out = set()
    for m in REG_RE.finditer(op):
        k = m.group(1)
        if m.group(2) is not None:
            out.add((k, int(m.group(2))))
        else:
            for i in range(int(m.group(3)), int(m.group(4)) + 1):
                out.add((k, i))
    for special in ('vcc', 'exec', 'm0', 'scc'):
        if re.search(r'\b' + special + r'(_lo|_hi)?\b', op):
            out.add((special, 0))
    return out

TRANS = ('v_exp_', 'v_log_', 'v_rcp_', 'v_rsq_', 'v_sqrt_', 'v_sin_', 'v_cos_')

class I:
    def __init__(self, text):
        self.text = text.strip()
        t = self.text.split(';')[0].strip()
        self.is_label = t.endswith(':')
        self.is_dir = t.startswith('.') and not self.is_label
        self.mn = '' if (self.is_label or self.is_dir or not t) else t.split()[0]
        self.ops = []
        self.w = set(); self.r = set()
        self.ws = 1
        if not self.mn:
            self.ws = 0
            self.kind = 'none'
            return
        rest = t[len(self.mn):].strip()
        ops = []; depth = 0; cur = ''
        for ch in rest:
            if ch == '[': depth += 1
            if ch == ']': depth -= 1
            if ch == ',' and depth == 0:
                ops.append(cur.strip()); cur = ''
            else:
                cur += ch
        if cur.strip(): ops.append(cur.strip())
        self.ops = ops
        mn = self.mn
        k = 'other'
        if mn.startswith('v_mfma'): k = 'mfma'
        elif mn.startswith('v_'): k = 'valu'
        elif mn.startswith('buffer_') or mn.startswith('global_') or mn.startswith('flat_'): k = 'vmem'
        elif mn.startswith('ds_'): k = 'ds'
        elif mn.startswith('s_load') or mn.startswith('s_memtime') or mn.startswith('s_buffer_load'): k = 'smem'
        elif mn.startswith('s_'): k = 'salu'
        self.kind = k
        if mn == 's_nop':
            self.ws = int(ops[0], 0) + 1
            return
        allr = [regs_of(o) for o in ops]
        if k == 'mfma':
            self.w = allr[0]
            self.A = allr[1]; self.B = allr[2]; self.C = allr[3]
            self.r = allr[1] | allr[2] | allr[3]
            self.passes = 8 if '32x32' in mn else 4
        elif k == 'valu':
            if mn.startswith('v_cmp'):
                self.w = allr[0]; self.r = set().union(*allr[1:])
                if mn.startswith('v_cmpx'): self.w |= {('exec', 0)}
            elif mn.startswith('v_permlane') and 'swap' in mn:
                self.w = allr[0] | allr[1]; self.r = allr[0] | allr[1]
            elif mn.startswith('v_add_co') or mn.startswith('v_sub_co') or mn.startswith('v_addc_co') or mn.startswith('v_subb_co'):
                self.w = allr[0] | allr[1]; self.r = set().union(*allr[2:])
            elif mn == 'v_nop':
                pass
            else:
                self.w = allr[0]; self.r = set().union(*allr[1:]) if len(allr) > 1 else set()
                if mn.startswith('v_fmac') or mn.startswith('v_mac') or 'PRESERVE' in t or mn.startswith('v_writelane'):
                    self.r |= allr[0]
                if mn.startswith('v_cndmask') and len(ops) == 3:
                    self.r |= {('vcc', 0)}
        elif k == 'vmem':
            islds = bool(re.search(r'\blds\b', t))
            if 'store' in mn or ('atomic' in mn and 'sc0' not in t) or islds:
                self.r = set().union(*allr)
                self.store_data = allr[0] if ('store' in mn and mn.startswith('buffer_')) else (allr[1] if 'store' in mn else set())
                if islds: self.r |= {('m0', 0)}
            else:
                self.w = allr[0]; self.r = set().union(*allr[1:])
                if 'd16' in mn: self.r |= allr[0]
            self.islds = islds
        elif k == 'ds':
            if 'write' in mn or mn.startswith('ds_add') or mn.startswith('ds_max') or mn.startswith('ds_or'):
                self.r = set().union(*allr)
            else:
                self.w = allr[0]; self.r = set().union(*allr[1:])
        elif k == 'smem':
            self.w = allr[0]; self.r = set().union(*allr[1:]) if len(allr) > 1 else set()
        elif k == 'salu':
            if mn.startswith('s_cmp') or mn.startswith('s_cbranch') or mn in ('s_branch', 's_barrier', 's_waitcnt', 's_endpgm', 's_setprio', 's_sleep'):
                self.r = set().union(*allr) if allr else set()
            else:
                self.w = allr[0] if allr else set()
                self.r = set().union(*allr[1:]) if len(allr) > 1 else set()
                if 'saveexec' in mn: self.w |= {('exec', 0)}
        self.trans = any(mn.startswith(x) for x in TRANS)

    def wide_store(self):
        return self.kind == 'vmem' and 'store' in self.mn and ('x4' in self.mn or 'x3' in self.mn)

def vonly(s):
    return {x for x in s if x[0] in 'va'}
def sonly(s):
    return {x for x in s if x[0] == 's' or x[0] == 'vcc'}

def need(p, c):
    n = 0
    if p.kind == 'none' or c.kind == 'none': return 0
    pw = vonly(p.w)
    if p.kind == 'valu':
        if c.kind == 'mfma' and pw & c.r: n = max(n, 2)
        if c.kind == 'valu':
            if p.trans and not c.trans and pw & c.r: n = max(n, 1)
            if p.trans and c.trans and pw & c.r: n = max(n, 1)
            if (c.mn.startswith('v_readlane') or c.mn.startswith('v_readfirstlane')) and pw & c.r: n = max(n, 1)
            if c.mn.startswith('v_permlane') and pw & c.r: n = max(n, 2)
            if 'dpp' in c.text.lower() or 'row_' in c.text or 'quad_perm' in c.text:
                if pw & c.r: n = max(n, 2)
            if ('sdwa' in p.text or 'op_sel' in p.text) and pw & (c.r | vonly(c.w)): n = max(n, 1)
            ps = sonly(p.w)
            if ps & c.r:
                n = max(n, 2)
                if c.mn.startswith('v_readlane') or c.mn.startswith('v_writelane'): n = max(n, 4)
            if ('exec', 0) in p.w:
                n = max(n, 5)
        if c.kind == 'mfma' and ('exec', 0) in p.w: n = max(n, 4)
        if c.kind == 'vmem' and sonly(p.w) & c.r: n = max(n, 5)
        if c.kind in ('salu', 'smem') and sonly(p.w) & c.r: n = max(n, 2)
    if p.kind == 'mfma':
        P = p.passes
        if c.kind == 'mfma':
            if pw & (c.A | c.B): n = max(n, 12 if P == 8 else 8)
            if pw & c.C:
                if c.C == p.w and c.passes == P: n = max(n, 0)
                else: n = max(n, 10 if P == 8 else 6)
            if pw & c.w and not (c.C == p.w and c.passes == P): n = max(n, 10 if P == 8 else 6)
        elif c.kind in ('valu', 'vmem', 'ds'):
            if pw & (c.r | vonly(c.w)): n = max(n, 12 if P == 8 else 8)
            if c.kind == 'valu' and vonly(p.C) & vonly(c.w): n = max(n, 7 if P == 8 else 3)
            if c.kind in ('vmem', 'ds') and vonly(p.C) & vonly(c.w): n = max(n, 7 if P == 8 else 3)
    if p.kind == 'vmem' and p.wide_store():
        if vonly(getattr(p, 'store_data', set())) & vonly(c.w): n = max(n, 2)
    if p.kind == 'salu' and ('m0', 0) in p.w and c.kind == 'vmem' and getattr(c, 'islds', False): n = max(n, 1)
    if p.kind == 'salu' and ('exec', 0) in p.w and c.kind in ('valu', 'mfma', 'vmem', 'ds'):
        n = max(n, 0)
    return n

MAXW = 20

class Kernel:
    def __init__(self, name):
        self.name = name
        self.ins = []
        self.uid = 0
    def __call__(self, text):
        for line in text.strip('\n').split('\n'):
            line = line.strip()
            if line:
                self._emit(I(line))
    def _emit(self, c):
        if c.kind != 'none':
            d = 0; req = 0
            for p in reversed(self.ins):
                if p.is_label and getattr(p, 'hard', False):
                    break
                if d >= MAXW: break
                nn = need(p, c)
                if nn > d: req = max(req, nn - d)
                d += p.ws
            while req > 0:
                k = min(req, 16)
                self.ins.append(I(f's_nop {k-1}'))
                req -= k
        self.ins.append(c)
    def label(self, base='L'):
        self.uid += 1
        return f'{base}_{self.name}_{self.uid}'
    def check_backedges(self):
        labels = {i.text.split(':')[0]: n for n, i in enumerate(self.ins) if i.is_label}
        errs = []
        for n, b in enumerate(self.ins):
            if b.mn.startswith('s_cbranch') or b.mn == 's_branch':
                tgt = b.ops[0]
                if tgt not in labels: continue
                t = labels[tgt]
                pre = []
                d = 0
                for p in reversed(self.ins[:n + 1]):
                    pre.append(p); d += p.ws
                    if d >= MAXW: break
                post = []
                d = 0
                for c in self.ins[t:]:
                    post.append(c); d += c.ws
                    if d >= MAXW: break
                    if c.mn == 's_branch' or c.mn == 's_endpgm': break
                dc = 0
                for c in post:
                    dp = dc
                    for p in pre:
                        nn = need(p, c)
                        if nn > dp:
                            errs.append(f'{self.name}: hazard across branch to {tgt}: "{p.text}" -> "{c.text}" need {nn} have {dp}')
                        dp += p.ws
                    dc += c.ws
        return errs
    def text(self):
        out = []
        for i in self.ins:
            out.append(i.text if (i.is_label or i.is_dir) else '    ' + i.text)
        return '\n'.join(out) + '\n'
    def max_regs(self):
        mv = ms = ma = -1
        for i in self.ins:
            for k, n in (i.w | i.r):
                if k == 'v': mv = max(mv, n)
                if k == 's': ms = max(ms, n)
                if k == 'a': ma = max(ma, n)
        return mv + 1, ms + 1, ma + 1

def descriptor(name, vgpr, sgpr, agpr=0):
    acc = (vgpr + 3) // 4 * 4
    acc = max(acc, 4)
    nfv = acc + agpr if agpr else vgpr
    return f""".section .rodata,"a"
.p2align 6
.amdhsa_kernel {name}
  .amdhsa_next_free_vgpr {nfv}
  .amdhsa_next_free_sgpr {sgpr}
  .amdhsa_accum_offset {acc}
  .amdhsa_group_segment_fixed_size 0
  .amdhsa_kernarg_size 88
  .amdhsa_user_sgpr_count 2
  .amdhsa_user_sgpr_kernarg_segment_ptr 1
  .amdhsa_system_sgpr_workgroup_id_x 1
.end_amdhsa_kernel
"""
```

```python
from asmgen import *
from layout import *
from k_prep import common_ids, ws_srd
from k_gemm import f32hex

def gen_attnA():
    k = Kernel('attnA_kernel')
    Q = 8
    KF = 16
    VF = 32
    S = 48
    P = 80
    O = 88
    NM = 104
    A0, A1 = 6, 7
    T0, T1, T2 = 120, 121, 122
    k("""
    s_cmp_ge_u32 s2, 256
    s_cbranch_scc1 L_attnA_end
    s_load_dwordx2 s[8:9], s[0:1], 80
    """)
    common_ids(k)
    ws_srd(k)
    k(f"""
    s_and_b32 s13, s12, 3
    s_lshr_b32 s14, s12, 2
    s_lshl_b32 s15, s2, 2
    s_add_u32 s15, s15, s13
    s_lshl_b32 s16, s15, 11
    s_add_u32 s17, s16, {OFF_OF:#x}
    s_add_u32 s16, s16, {OFF_QF:#x}
    s_lshl_b32 s18, s14, 17
    s_add_u32 s18, s18, {OFF_KV:#x}
    s_lshl_b32 s19, s13, 12
    s_add_u32 s18, s18, s19
    s_lshl_b32 s20, s14, 16
    s_add_u32 s21, s20, s19
    s_mov_b32 s30, 0
    s_waitcnt lgkmcnt(0)
    buffer_load_dwordx4 v[{Q}:{Q+3}], v5, s[8:11], s16 offen
    buffer_load_dwordx4 v[{Q+4}:{Q+7}], v5, s[8:11], s16 offen offset:1024
    """)
    def dma(sub_sreg_or_const):
        pass
    k("L_attnA_start:")
    for u in range(3):
        k(f"""
        s_add_u32 m0, s21, {u*16384}
        s_add_u32 s22, s18, {u*16384}
        """)
        for i in range(4):
            k(f"buffer_load_dwordx4 v5, s[8:11], s22 offen offset:{i*1024} lds")
    k(f"""
    v_add_u32 v{A0}, s20, v5
    v_add_u32 v{A1}, 0x4000, v{A0}
    s_waitcnt vmcnt(4)
    s_barrier
    s_cmp_lg_u32 s30, 0
    s_cbranch_scc1 L_attnA_havemax
    """)
    k(f"""
    ds_read_b128 v[{KF}:{KF+3}], v5
    ds_read_b128 v[{KF+4}:{KF+7}], v5 offset:1024
    s_waitcnt lgkmcnt(0)
    v_mfma_f32_32x32x16_bf16 v[{S}:{S+15}], v[{KF}:{KF+3}], v[{Q}:{Q+3}], 0
    v_mfma_f32_32x32x16_bf16 v[{S}:{S+15}], v[{KF+4}:{KF+7}], v[{Q+4}:{Q+7}], v[{S}:{S+15}]
    v_max3_f32 v{T0}, v{S}, v{S+1}, v{S+2}
    """)
    for r in range(3, 15, 2):
        k(f"v_max3_f32 v{T0}, v{T0}, v{S+r}, v{S+r+1}")
    k(f"""
    v_max_f32 v{T0}, v{T0}, v{S+15}
    v_mov_b32 v{T1}, v{T0}
    v_permlane32_swap_b32 v{T0}, v{T1}
    v_max_f32 v{T0}, v{T0}, v{T1}
    """)
    k("L_attnA_havemax:")
    for r in range(16):
        k(f"v_sub_f32 v{NM+r}, 0, v{T0}")
    for r in range(16):
        k(f"v_mov_b32 v{O+r}, 0")
    for r in range(4):
        k(f"v_mov_b32 v{P+4+r}, 0")
        k(f"v_mov_b32 v{VF+8+4+r}, 0")
    k(f"""
    ds_read_b128 v[{KF}:{KF+3}], v{A0}
    ds_read_b128 v[{KF+4}:{KF+7}], v{A0} offset:1024
    ds_read_b128 v[{KF+8}:{KF+11}], v{A0} offset:4096
    ds_read_b128 v[{KF+12}:{KF+15}], v{A0} offset:5120
    ds_read_b128 v[{VF}:{VF+3}], v{A0} offset:2048
    ds_read_b128 v[{VF+4}:{VF+7}], v{A0} offset:3072
    s_waitcnt lgkmcnt(4)
    v_mfma_f32_32x32x16_bf16 v[{S}:{S+15}], v[{KF}:{KF+3}], v[{Q}:{Q+3}], v[{NM}:{NM+15}]
    v_mfma_f32_32x32x16_bf16 v[{S}:{S+15}], v[{KF+4}:{KF+7}], v[{Q+4}:{Q+7}], v[{S}:{S+15}]
    s_mov_b32 s23, 0
    s_nop 7
    """)
    k("L_attnA_loop:")
    k(f"""
    s_waitcnt vmcnt(0) lgkmcnt(0)
    s_barrier
    s_cmp_ge_u32 s23, 5
    s_cbranch_scc1 L_attnA_nodma
    s_add_u32 s24, s23, 3
    s_lshl_b32 s22, s24, 14
    s_add_u32 s22, s22, s18
    s_and_b32 s24, s24, 3
    s_lshl_b32 s24, s24, 14
    s_add_u32 m0, s24, s21
    """)
    for i in range(4):
        k(f"buffer_load_dwordx4 v5, s[8:11], s22 offen offset:{i*1024} lds")
    k("L_attnA_nodma:")
    for j in range(4):
        b = j & 1; nb = b ^ 1
        Sc = S + 16 * b; Sn = S + 16 * nb
        Kn = KF + 8 * nb
        Kl = KF + 8 * b
        Vc = VF + 8 * b
        Vp = VF + 8 * nb
        def addr(tile):
            return (A0, tile * 4096) if tile < 4 else (A1, (tile - 4) * 4096)
        e = lambda r: k(f"v_exp_f32 v{Sc+r}, v{Sc+r}")
        c = lambda i: k(f"v_cvt_pk_bf16_f32 v{P+i}, v{Sc+2*i}, v{Sc+2*i+1}")
        if j > 0:
            k("s_waitcnt lgkmcnt(0)")
        e(0); e(1)
        k(f"v_mfma_f32_32x32x16_bf16 v[{O}:{O+15}], v[{Vp+4}:{Vp+7}], v[{P+4}:{P+7}], v[{O}:{O+15}]")
        a, off = addr(j + 2)
        k(f"ds_read_b128 v[{Kl}:{Kl+3}], v{a} offset:{off}")
        k(f"ds_read_b128 v[{Kl+4}:{Kl+7}], v{a} offset:{off+1024}")
        e(2); e(3); c(0); c(1)
        k(f"v_mfma_f32_32x32x16_bf16 v[{Sn}:{Sn+15}], v[{Kn}:{Kn+3}], v[{Q}:{Q+3}], v[{NM}:{NM+15}]")
        a, off = addr(j + 1)
        k(f"ds_read_b128 v[{Vp}:{Vp+3}], v{a} offset:{off+2048}")
        k(f"ds_read_b128 v[{Vp+4}:{Vp+7}], v{a} offset:{off+3072}")
        e(4); e(5); e(6); e(7); c(2); c(3)
        k(f"v_mfma_f32_32x32x16_bf16 v[{Sn}:{Sn+15}], v[{Kn+4}:{Kn+7}], v[{Q+4}:{Q+7}], v[{Sn}:{Sn+15}]")
        e(8); e(9); e(10); e(11); c(4); c(5)
        k(f"v_mfma_f32_32x32x16_bf16 v[{O}:{O+15}], v[{Vc}:{Vc+3}], v[{P}:{P+3}], v[{O}:{O+15}]")
        e(12); e(13); e(14); e(15); c(6); c(7)
    k(f"""
    s_add_u32 s23, s23, 1
    s_add_u32 s24, s23, 1
    s_and_b32 s24, s24, 3
    s_lshl_b32 s24, s24, 14
    s_add_u32 s24, s24, s20
    v_mov_b32 v{A0}, v{A1}
    v_add_u32 v{A1}, s24, v5
    s_cmp_lt_u32 s23, 8
    s_cbranch_scc1 L_attnA_loop
    """)
    k(f"""
    v_mfma_f32_32x32x16_bf16 v[{O}:{O+15}], v[{VF+8+4}:{VF+8+7}], v[{P+4}:{P+7}], v[{O}:{O+15}]
    s_waitcnt vmcnt(0) lgkmcnt(0)
    s_barrier
    s_lshl_b32 s24, s13, 12
    v_add_u32 v{T1}, s24, v5
    s_cmp_eq_u32 s14, 0
    s_cbranch_scc1 L_attnA_comb
    """)
    for q in range(4):
        k(f"ds_write_b128 v{T1}, v[{O+4*q}:{O+4*q+3}] offset:{q*1024}")
    k("""
    s_waitcnt lgkmcnt(0)
    s_barrier
    s_branch L_attnA_end
L_attnA_comb:
    s_barrier
    """)
    for q in range(4):
        k(f"ds_read_b128 v[{S+4*q}:{S+4*q+3}], v{T1} offset:{q*1024}")
    k("s_waitcnt lgkmcnt(0)")
    for r in range(16):
        k(f"v_add_f32 v{O+r}, v{O+r}, v{S+r}")
    k(f"""
    v_mov_b32 v{T1}, v{O+12}
    v_mov_b32 v{T2}, v{O+12}
    v_permlane32_swap_b32 v{T1}, v{T2}
    v_rcp_f32 v{T2}, v{T2}
    v_cmp_eq_u32 vcc, 0, v4
    v_cndmask_b32 v{T1}, 0, -1, vcc
    """)
    for r in range(16):
        k(f"v_mul_f32 v{O+r}, v{O+r}, v{T2}")
    for i in range(8):
        k(f"v_cvt_pk_bf16_f32 v{P+i}, v{O+2*i}, v{O+2*i+1}")
    k(f"""
    v_and_b32 v{P+6}, v{P+6}, v{T1}
    v_and_b32 v{P+7}, v{P+7}, v{T1}
    buffer_store_dwordx4 v[{P}:{P+3}], v5, s[8:11], s17 offen
    buffer_store_dwordx4 v[{P+4}:{P+7}], v5, s[8:11], s17 offen offset:1024
L_attnA_end:
    s_endpgm
    """)
    return k, dict(grid=256, block=512, lds=131072)

def gen_attnB():
    k = Kernel('attnB_kernel')
    Q = 8; KF = 16; VF = 24; S = 32; P = 48; O = 56; NM = 72; MD = 88; MF = 104
    T0, T1, T2, AD = 120, 121, 122, 6
    k("""
    s_cmp_ge_u32 s2, 256
    s_cbranch_scc1 L_attnB_end
    s_load_dwordx2 s[8:9], s[0:1], 80
    """)
    common_ids(k)
    ws_srd(k)
    k(f"""
    s_and_b32 s13, s2, 15
    s_lshr_b32 s14, s2, 4
    s_lshl_b32 s15, s13, 2
    s_add_u32 s15, s15, s12
    s_lshl_b32 s16, s15, 4
    s_add_u32 s16, s16, s14
    s_lshl_b32 s16, s16, 11
    s_add_u32 s17, s16, {OFF_OF:#x}
    s_add_u32 s16, s16, {OFF_QF:#x}
    s_lshl_b32 s18, s14, 6
    s_lshl_b32 s19, s13, 2
    s_add_u32 s18, s18, s19
    s_sub_u32 s18, s18, 8
    s_lshl_b32 s18, s18, 12
    s_add_u32 s18, s18, {OFF_KV:#x}
    s_waitcnt lgkmcnt(0)
    buffer_load_dwordx4 v[{Q}:{Q+3}], v5, s[8:11], s16 offen
    buffer_load_dwordx4 v[{Q+4}:{Q+7}], v5, s[8:11], s16 offen offset:1024
    """)
    for grp in (2, 1, 0):
        lab = f"L_attnB_skip{grp}"
        if grp < 2:
            k(f"""
            s_cmp_lt_u32 s13, {2 - grp}
            s_cbranch_scc1 {lab}
            """)
        k(f"""
        s_lshl_b32 s20, s12, 12
        s_add_u32 m0, s20, {grp*16384}
        s_add_u32 s21, s18, m0
        """)
        for i in range(4):
            k(f"buffer_load_dwordx4 v5, s[8:11], s21 offen offset:{i*1024} lds")
        if grp < 2:
            k(f"{lab}:")
    k(f"""
    v_lshlrev_b32 v{T0}, 2, v4
    v_sub_u32 v{T0}, v3, v{T0}
    v_mov_b32 v{T1}, {f32hex(-1e30)}
    """)
    for r in range(16):
        cr = 8 * (r >> 2) + (r & 3)
        k(f"""
        v_cmp_le_i32 vcc, {cr}, v{T0}
        v_cndmask_b32 v{MD+r}, v{T1}, 0, vcc
        v_cndmask_b32 v{MF+r}, 0, v{T1}, vcc
        """)
    k(f"""
    s_add_u32 s20, s12, 8
    s_lshl_b32 s20, s20, 12
    v_add_u32 v{AD}, s20, v5
    s_min_u32 s22, s15, 7
    s_waitcnt vmcnt(0)
    s_barrier
    """)
    def qk(dst, c, off=None, areg=AD):
        k(f"""
        ds_read_b128 v[{KF}:{KF+3}], v{areg}
        ds_read_b128 v[{KF+4}:{KF+7}], v{areg} offset:1024
        s_waitcnt lgkmcnt(0)
        v_mfma_f32_32x32x16_bf16 v[{dst}:{dst+15}], v[{KF}:{KF+3}], v[{Q}:{Q+3}], {c}
        v_mfma_f32_32x32x16_bf16 v[{dst}:{dst+15}], v[{KF+4}:{KF+7}], v[{Q+4}:{Q+7}], v[{dst}:{dst+15}]
        """)
    def mx(first):
        if first:
            k(f"v_max3_f32 v{T0}, v{S}, v{S+1}, v{S+2}")
            for r in range(3, 15, 2):
                k(f"v_max3_f32 v{T0}, v{T0}, v{S+r}, v{S+r+1}")
            k(f"v_max_f32 v{T0}, v{T0}, v{S+15}")
        else:
            for r in range(0, 16, 2):
                k(f"v_max3_f32 v{T0}, v{T0}, v{S+r}, v{S+r+1}")
    qk(S, f"v[{MD}:{MD+15}]")
    mx(True)
    k(f"""
    v_mov_b32 v7, v{AD}
    s_mov_b32 s23, s22
    s_cmp_eq_u32 s23, 0
    s_cbranch_scc1 L_attnB_p1far
L_attnB_p1loop:
    v_subrev_u32 v7, 0x1000, v7
    """)
    qk(S, "0", areg=7)
    mx(False)
    k(f"""
    s_sub_u32 s23, s23, 1
    s_cmp_lg_u32 s23, 0
    s_cbranch_scc1 L_attnB_p1loop
L_attnB_p1far:
    s_cmp_lt_u32 s15, 8
    s_cbranch_scc1 L_attnB_p1done
    v_subrev_u32 v7, 0x1000, v7
    """)
    qk(S, f"v[{MF}:{MF+15}]", areg=7)
    mx(False)
    k(f"""
L_attnB_p1done:
    v_mov_b32 v{T1}, v{T0}
    v_permlane32_swap_b32 v{T0}, v{T1}
    v_max_f32 v{T0}, v{T0}, v{T1}
    """)
    for r in range(16):
        k(f"""
        v_sub_f32 v{NM+r}, 0, v{T0}
        v_sub_f32 v{MD+r}, v{MD+r}, v{T0}
        v_sub_f32 v{MF+r}, v{MF+r}, v{T0}
        """)
    def pv(first, areg):
        k(f"""
        ds_read_b128 v[{VF}:{VF+3}], v{areg} offset:2048
        ds_read_b128 v[{VF+4}:{VF+7}], v{areg} offset:3072
        """)
        for r in range(16):
            k(f"v_exp_f32 v{S+r}, v{S+r}")
        for i in range(8):
            k(f"v_cvt_pk_bf16_f32 v{P+i}, v{S+2*i}, v{S+2*i+1}")
        c = '0' if first else f"v[{O}:{O+15}]"
        k(f"""
        s_waitcnt lgkmcnt(0)
        v_mfma_f32_32x32x16_bf16 v[{O}:{O+15}], v[{VF}:{VF+3}], v[{P}:{P+3}], {c}
        v_mfma_f32_32x32x16_bf16 v[{O}:{O+15}], v[{VF+4}:{VF+7}], v[{P+4}:{P+7}], v[{O}:{O+15}]
        """)
    qk(S, f"v[{MD}:{MD+15}]")
    pv(True, AD)
    k(f"""
    v_mov_b32 v7, v{AD}
    s_mov_b32 s23, s22
    s_cmp_eq_u32 s23, 0
    s_cbranch_scc1 L_attnB_p2far
L_attnB_p2loop:
    v_subrev_u32 v7, 0x1000, v7
    """)
    qk(S, f"v[{NM}:{NM+15}]", areg=7)
    pv(False, 7)
    k(f"""
    s_sub_u32 s23, s23, 1
    s_cmp_lg_u32 s23, 0
    s_cbranch_scc1 L_attnB_p2loop
L_attnB_p2far:
    s_cmp_lt_u32 s15, 8
    s_cbranch_scc1 L_attnB_p2done
    v_subrev_u32 v7, 0x1000, v7
    """)
    qk(S, f"v[{MF}:{MF+15}]", areg=7)
    pv(False, 7)
    k(f"""
L_attnB_p2done:
    s_nop 15
    v_mov_b32 v{T1}, v{O+12}
    v_mov_b32 v{T2}, v{O+12}
    v_permlane32_swap_b32 v{T1}, v{T2}
    v_rcp_f32 v{T2}, v{T2}
    v_cmp_eq_u32 vcc, 0, v4
    v_cndmask_b32 v{T1}, 0, -1, vcc
    """)
    for r in range(16):
        k(f"v_mul_f32 v{O+r}, v{O+r}, v{T2}")
    for i in range(8):
        k(f"v_cvt_pk_bf16_f32 v{P+i}, v{O+2*i}, v{O+2*i+1}")
    k(f"""
    v_and_b32 v{P+6}, v{P+6}, v{T1}
    v_and_b32 v{P+7}, v{P+7}, v{T1}
    buffer_store_dwordx4 v[{P}:{P+3}], v5, s[8:11], s17 offen
    buffer_store_dwordx4 v[{P+4}:{P+7}], v5, s[8:11], s17 offen offset:1024
L_attnB_end:
    s_endpgm
    """)
    return k, dict(grid=256, block=256, lds=49152)
```

```python
from asmgen import *
from layout import *
from k_prep import common_ids, ws_srd

QSCALE = (28 ** -0.5) * 1.4426950408889634
def f32hex(x):
    import struct
    return '0x%08x' % struct.unpack('<I', struct.pack('<f', x))[0]

V_LB2 = 6
V_NM, V_RS, V_T0, V_T1 = 8, 9, 10, 11
V_MA, V_MB = 12, 13
V_WB = 16
V_ACC = 40
V_CS = 88
V_ST = 136
V_PK = 164
V_XO = 172

def gemm_main(k, NT, KS, forms, chunks, extra_loads):
    G = KS // 4
    k("""
    s_lshl_b32 s22, s12, 10
    s_add_u32 s23, s21, s22
    """)
    for g in range(G):
        for t in range(NT):
            off = t * KS * 1024 + g * 4096
            k(f"""
            s_add_u32 m0, s22, {off}
            s_add_u32 s24, s23, {off}
            buffer_load_dwordx4 v5, s[8:11], s24 offen lds
            """)
        k(f"s_add_u32 s25, s20, {g*4096}")
        for i in range(4):
            s = 4 * g + i
            k(f"buffer_load_dwordx4 a[{4*s}:{4*s+3}], v5, s[8:11], s25 offen offset:{i*1024}")
    total = G * (NT + 4)
    def wread(s, buf):
        for t in range(NT):
            off = (t * KS + s) * 1024
            base = 'v5'
            if off >= 65536:
                off -= 65536; base = f'v{V_LB2}'
            r = V_WB + (buf * NT + t) * 4
            k(f"ds_read_b128 v[{r}:{r+3}], {base} offset:{off}")
    def mfmas(s, buf):
        for t in range(NT):
            r = V_WB + (buf * NT + t) * 4
            acc = f"v[{V_ACC+16*t}:{V_ACC+16*t+15}]"
            c = '0' if s == 0 else acc
            w = f"v[{r}:{r+3}]"; x = f"a[{4*s}:{4*s+3}]"
            if forms[t] == 'T':
                k(f"v_mfma_f32_32x32x16_bf16 {acc}, {w}, {x}, {c}")
            else:
                k(f"v_mfma_f32_32x32x16_bf16 {acc}, {x}, {w}, {c}")
    g0 = 0
    nextra = 0
    for ci, ng in enumerate(chunks):
        g1 = g0 + ng
        k(f"s_waitcnt vmcnt({total - g1 * (NT + 4) + nextra})")
        k("s_barrier")
        if ci == 0:
            nextra = extra_loads(k)
        s0, s1 = 4 * g0, 4 * g1
        wread(s0, s0 & 1)
        for s in range(s0, s1):
            if s + 1 < s1:
                wread(s + 1, (s + 1) & 1)
                k(f"s_waitcnt lgkmcnt({NT})")
            else:
                k("s_waitcnt lgkmcnt(0)")
            mfmas(s, s & 1)
        g0 = g1
    assert g0 == G

def stats_loads(k):
    k(f"""
    v_add_u32 v{V_T0}, s26, v3
    v_lshlrev_b32 v{V_T0}, 7, v{V_T0}
    s_mov_b32 s27, {OFF_STATS:#x}
    """)
    for i in range(7):
        k(f"buffer_load_dwordx4 v[{V_ST+4*i}:{V_ST+4*i+3}], v{V_T0}, s[8:11], s27 offen offset:{16*i}")
    return 7

def cs_loads(k, t, form, sreg):
    if form == 'T':
        k(f"v_lshlrev_b32 v{V_T1}, 4, v4")
        for q in range(4):
            k(f"buffer_load_dwordx4 v[{V_CS+16*t+4*q}:{V_CS+16*t+4*q+3}], v{V_T1}, s[8:11], {sreg} offen offset:{32*q}")
        return 4
    k(f"v_lshlrev_b32 v{V_T1}, 2, v3")
    k(f"buffer_load_dword v{V_CS+16*t}, v{V_T1}, s[8:11], {sreg} offen")
    return 1

def stats_finish(k):
    for i in range(1, 14):
        k(f"v_add_f32 v{V_ST}, v{V_ST}, v{V_ST+2*i}")
        k(f"v_add_f32 v{V_ST+1}, v{V_ST+1}, v{V_ST+2*i+1}")
    k(f"""
    v_mul_f32 v{V_NM}, {f32hex(-1.0/448)}, v{V_ST}
    v_mul_f32 v{V_T0}, {f32hex(1.0/448)}, v{V_ST+1}
    v_fma_f32 v{V_T0}, -v{V_NM}, v{V_NM}, v{V_T0}
    v_max_f32 v{V_T0}, 0, v{V_T0}
    v_add_f32 v{V_T0}, {f32hex(1e-5)}, v{V_T0}
    v_rsq_f32 v{V_RS}, v{V_T0}
    """)

def epi_T(k, t, scale_reg, dest_sreg):
    a = V_ACC + 16 * t; c = V_CS + 16 * t
    for r in range(16):
        k(f"v_fmac_f32 v{a+r}, v{c+r}, v{V_NM}")
        k(f"v_mul_f32 v{a+r}, v{a+r}, v{scale_reg}")
    for i in range(8):
        k(f"v_cvt_pk_bf16_f32 v{V_PK+i}, v{a+2*i}, v{a+2*i+1}")
    k(f"""
    v_and_b32 v{V_PK+6}, v{V_PK+6}, v{V_MA}
    v_and_b32 v{V_PK+7}, v{V_PK+7}, v{V_MA}
    buffer_store_dwordx4 v[{V_PK}:{V_PK+3}], v5, s[8:11], {dest_sreg} offen
    buffer_store_dwordx4 v[{V_PK+4}:{V_PK+7}], v5, s[8:11], {dest_sreg} offen offset:1024
    """)

def epi_N(k, t, dest_sreg, lds_off):
    a = V_ACC + 16 * t; c = V_CS + 16 * t
    B = V_ST
    regs = list(range(V_ST, V_ST + 28)) + [16, 17, 18, 19]
    k(f"""
    s_lshl_b32 s28, s12, 8
    s_add_u32 s28, s28, {lds_off}
    v_lshl_add_u32 v{V_T0}, v3, 3, s28
    ds_write_b64 v{V_T0}, v[{V_NM}:{V_RS}]
    v_lshl_add_u32 v{V_T0}, v4, 5, s28
    s_waitcnt lgkmcnt(0)
    """)
    for q in range(4):
        for h in range(2):
            r0 = regs[8 * q + 4 * h]
            k(f"ds_read_b128 v[{r0}:{r0+3}], v{V_T0} offset:{64*q + 16*h}")
    k(f"""
    v_cmp_gt_u32 vcc, 28, v3
    v_cndmask_b32 v{V_MA}, 0, -1, vcc
    v_mov_b32 v{V_T1}, 0x3f803f80
    v_cmp_eq_u32 vcc, 28, v3
    v_cndmask_b32 v{V_MB}, 0, v{V_T1}, vcc
    s_waitcnt lgkmcnt(0)
    """)
    for r in range(16):
        nm = regs[2 * r]; rs = regs[2 * r + 1]
        k(f"v_fmac_f32 v{a+r}, v{c}, v{nm}")
        k(f"v_mul_f32 v{a+r}, v{a+r}, v{rs}")
    for i in range(8):
        k(f"v_cvt_pk_bf16_f32 v{V_PK+i}, v{a+2*i}, v{a+2*i+1}")
        k(f"v_and_or_b32 v{V_PK+i}, v{V_PK+i}, v{V_MA}, v{V_MB}")
    k(f"""
    buffer_store_dwordx4 v[{V_PK}:{V_PK+3}], v5, s[8:11], {dest_sreg} offen
    buffer_store_dwordx4 v[{V_PK+4}:{V_PK+7}], v5, s[8:11], {dest_sreg} offen offset:1024
    """)

def prologue(k, nwg, endlabel):
    k(f"""
    s_cmp_ge_u32 s2, {nwg}
    s_cbranch_scc1 {endlabel}
    s_load_dwordx2 s[8:9], s[0:1], 80
    """)
    common_ids(k)
    ws_srd(k)
    k(f"""
    v_add_u32 v{V_LB2}, 0x10000, v5
    s_and_b32 s13, s2, 15
    s_lshr_b32 s14, s2, 4
    s_lshl_b32 s15, s13, 2
    s_add_u32 s15, s15, s12
    s_lshl_b32 s26, s15, 5
    """)

def hhmask(k):
    k(f"""
    v_cmp_eq_u32 vcc, 0, v4
    v_cndmask_b32 v{V_MA}, 0, -1, vcc
    """)

CH28 = [2, 2, 2, 1]
CH32 = [2, 2, 2, 2]

def gen_qkvA():
    k = Kernel('qkvA_kernel')
    prologue(k, 144, 'L_qkvA_end')
    NT, KS = 2, 28
    k(f"""
    s_mul_i32 s20, s15, {KS*1024}
    s_add_u32 s20, s20, {OFF_XF:#x}
    s_mul_i32 s21, s14, {NT*KS*1024}
    s_add_u32 s21, s21, {OFF_WQA:#x}
    s_lshl_b32 s30, s14, 8
    s_add_u32 s30, s30, {OFF_CSA:#x}
    s_add_u32 s31, s30, 128
    s_waitcnt lgkmcnt(0)
    s_cmp_eq_u32 s14, 8
    s_cbranch_scc1 L_qkvA_kv
    """)
    def ex(k):
        return stats_loads(k) + cs_loads(k, 0, 'T', 's30') + cs_loads(k, 1, 'T', 's31')
    gemm_main(k, NT, KS, 'TT', CH28, ex)
    k("s_waitcnt vmcnt(0)")
    stats_finish(k)
    hhmask(k)
    k(f"""
    v_mul_f32 v{V_RS}, {f32hex(QSCALE)}, v{V_RS}
    s_lshl_b32 s32, s15, 4
    s_lshl_b32 s33, s14, 1
    s_add_u32 s32, s32, s33
    s_lshl_b32 s32, s32, 11
    s_add_u32 s32, s32, {OFF_QF:#x}
    s_add_u32 s33, s32, 2048
    """)
    epi_T(k, 0, V_RS, 's32')
    epi_T(k, 1, V_RS, 's33')
    k("s_endpgm")
    k("L_qkvA_kv:")
    def ex2(k):
        return stats_loads(k) + cs_loads(k, 0, 'T', 's30') + cs_loads(k, 1, 'N', 's31')
    gemm_main(k, NT, KS, 'TN', CH28, ex2)
    k("s_waitcnt vmcnt(0)")
    stats_finish(k)
    hhmask(k)
    k(f"""
    s_lshl_b32 s32, s15, 12
    s_add_u32 s32, s32, {OFF_KV:#x}
    s_add_u32 s33, s32, 2048
    """)
    epi_T(k, 0, V_RS, 's32')
    epi_N(k, 1, 's33', NT * KS * 1024)
    k("""
L_qkvA_end:
    s_endpgm
    """)
    return k, dict(grid=144, block=256, lds=NT * KS * 1024 + 1024, agpr=4 * KS)

def gen_qkvB():
    k = Kernel('qkvB_kernel')
    prologue(k, 256, 'L_qkvB_end')
    NT, KS = 3, 28
    k(f"""
    s_mul_i32 s20, s15, {KS*1024}
    s_add_u32 s20, s20, {OFF_XF:#x}
    s_mul_i32 s21, s14, {NT*KS*1024}
    s_add_u32 s21, s21, {OFF_WQB:#x}
    s_mul_i32 s30, s14, 384
    s_add_u32 s30, s30, {OFF_CSB:#x}
    s_add_u32 s31, s30, 128
    s_add_u32 s29, s30, 256
    s_waitcnt lgkmcnt(0)
    """)
    def ex(k):
        return stats_loads(k) + cs_loads(k, 0, 'T', 's30') + cs_loads(k, 1, 'T', 's31') + cs_loads(k, 2, 'N', 's29')
    gemm_main(k, NT, KS, 'TTN', CH28, ex)
    k("s_waitcnt vmcnt(0)")
    stats_finish(k)
    hhmask(k)
    k(f"""
    v_mul_f32 v14, {f32hex(QSCALE)}, v{V_RS}
    s_lshl_b32 s32, s15, 4
    s_add_u32 s32, s32, s14
    s_lshl_b32 s32, s32, 11
    s_add_u32 s32, s32, {OFF_QF:#x}
    s_lshl_b32 s33, s14, 6
    s_add_u32 s33, s33, s15
    s_lshl_b32 s33, s33, 12
    s_add_u32 s33, s33, {OFF_KV:#x}
    s_add_u32 s34, s33, 2048
    """)
    epi_T(k, 0, 14, 's32')
    epi_T(k, 1, V_RS, 's33')
    epi_N(k, 2, 's34', NT * KS * 1024)
    k("""
L_qkvB_end:
    s_endpgm
    """)
    return k, dict(grid=256, block=256, lds=NT * KS * 1024 + 1024, agpr=4 * KS)

def gen_proj(name, woff, final):
    k = Kernel(name)
    prologue(k, 224, f'L_{name}_end')
    NT, KS = 1, 32
    if final:
        k("s_load_dwordx2 s[16:17], s[0:1], 64")
    k(f"""
    s_lshl_b32 s20, s15, 15
    s_add_u32 s20, s20, {OFF_OF:#x}
    s_lshl_b32 s21, s14, 15
    s_add_u32 s21, s21, {woff:#x}
    s_mul_i32 s30, s15, 28672
    s_lshl_b32 s31, s14, 11
    s_add_u32 s30, s30, s31
    s_add_u32 s30, s30, {OFF_XF:#x}
    s_waitcnt lgkmcnt(0)
    """)
    def ex(k):
        k(f"""
        buffer_load_dwordx4 v[{V_XO}:{V_XO+3}], v5, s[8:11], s30 offen
        buffer_load_dwordx4 v[{V_XO+4}:{V_XO+7}], v5, s[8:11], s30 offen offset:1024
        """)
        return 2
    gemm_main(k, NT, KS, 'T', CH32, ex)
    k("s_waitcnt vmcnt(0)")
    a = V_ACC
    for i in range(8):
        k(f"""
        v_lshlrev_b32 v{V_T0}, 16, v{V_XO+i}
        v_and_b32 v{V_T1}, 0xffff0000, v{V_XO+i}
        v_add_f32 v{a+2*i}, v{a+2*i}, v{V_T0}
        v_add_f32 v{a+2*i+1}, v{a+2*i+1}, v{V_T1}
        v_cvt_pk_bf16_f32 v{V_PK+i}, v{a+2*i}, v{a+2*i+1}
        """)
    if final:
        k(f"""
        s_mov_b32 s18, {2048*896}
        s_mov_b32 s19, 0x00020000
        v_add_u32 v{V_T0}, s26, v3
        v_mul_u32_u24 v{V_T0}, 896, v{V_T0}
        v_lshl_add_u32 v{V_T0}, v4, 3, v{V_T0}
        s_lshl_b32 s31, s14, 6
        """)
        for q in range(4):
            k(f"buffer_store_dwordx2 v[{V_PK+2*q}:{V_PK+2*q+1}], v{V_T0}, s[16:19], s31 offen offset:{16*q}")
    else:
        k(f"""
        buffer_store_dwordx4 v[{V_PK}:{V_PK+3}], v5, s[8:11], s30 offen
        buffer_store_dwordx4 v[{V_PK+4}:{V_PK+7}], v5, s[8:11], s30 offen offset:1024
        v_mov_b32 v{V_NM}, 0
        v_mov_b32 v{V_RS}, 0
        """)
        for i in range(8):
            k(f"""
            v_lshlrev_b32 v{V_T0}, 16, v{V_PK+i}
            v_and_b32 v{V_T1}, 0xffff0000, v{V_PK+i}
            v_add_f32 v{V_NM}, v{V_NM}, v{V_T0}
            v_fmac_f32 v{V_RS}, v{V_T0}, v{V_T0}
            v_add_f32 v{V_NM}, v{V_NM}, v{V_T1}
            v_fmac_f32 v{V_RS}, v{V_T1}, v{V_T1}
            """)
        k(f"""
        v_mov_b32 v{V_T0}, v{V_NM}
        v_mov_b32 v{V_T1}, v{V_RS}
        v_permlane32_swap_b32 v{V_NM}, v{V_T0}
        v_permlane32_swap_b32 v{V_RS}, v{V_T1}
        v_add_f32 v{V_NM}, v{V_NM}, v{V_T0}
        v_add_f32 v{V_RS}, v{V_RS}, v{V_T1}
        v_add_u32 v{V_T0}, s26, v3
        v_lshlrev_b32 v{V_T0}, 7, v{V_T0}
        s_lshl_b32 s31, s14, 3
        s_add_u32 s31, s31, {OFF_STATS:#x}
        buffer_store_dwordx2 v[{V_NM}:{V_RS}], v{V_T0}, s[8:11], s31 offen
        """)
    k(f"""
L_{name}_end:
    s_endpgm
    """)
    return k, dict(grid=224, block=256, lds=NT * KS * 1024, agpr=4 * KS)
```

```python
from asmgen import *
from layout import *

def common_ids(k):
    k("""
    v_lshrrev_b32 v1, 6, v0
    v_and_b32 v2, 63, v0
    v_readfirstlane_b32 s12, v1
    v_and_b32 v3, 31, v2
    v_lshrrev_b32 v4, 5, v2
    v_lshlrev_b32 v5, 4, v2
    """)

def ws_srd(k, base=8):
    k(f"""
    s_mov_b32 s{base+2}, {WS_BYTES:#x}
    s_mov_b32 s{base+3}, 0x00020000
    """)

def gen_prep():
    k = Kernel('prep_kernel')
    k("""
    s_cmp_ge_u32 s2, 158
    s_cbranch_scc1 L_prep_end
    s_load_dwordx16 s[16:31], s[0:1], 0
    s_load_dwordx2 s[8:9], s[0:1], 80
    """)
    common_ids(k)
    ws_srd(k)
    k("""
    s_mov_b32 s7, 0x00020000
    s_waitcnt lgkmcnt(0)
    s_cmp_ge_u32 s2, 94
    s_cbranch_scc1 L_prep_x
    s_cmp_ge_u32 s2, 66
    s_cbranch_scc1 L_prep_wo
    s_cmp_ge_u32 s2, 18
    s_cbranch_scc1 L_prep_qb
    """)
    k(f"""
    s_mul_i32 s34, s2, 28672
    s_add_u32 s34, s34, {OFF_WQA:#x}
    s_lshl_b32 s35, s2, 7
    s_add_u32 s35, s35, {OFF_CSA:#x}
    s_cmp_ge_u32 s2, 16
    s_cbranch_scc1 L_prep_kv
    s_mov_b64 s[4:5], s[18:19]
    s_mov_b32 s6, {448*896}
    s_mov_b32 s32, 896
    s_mul_i32 s33, s2, 56
    s_branch L_prep_qkv_go
L_prep_kv:
    s_mov_b64 s[4:5], s[20:21]
    s_cmp_eq_u32 s2, 16
    s_cbranch_scc1 L_prep_kv2
    s_mov_b64 s[4:5], s[22:23]
L_prep_kv2:
    s_mov_b32 s6, {448*56}
    s_mov_b32 s32, 56
    s_mov_b32 s33, 0
    s_branch L_prep_qkv_go
L_prep_qb:
    s_sub_u32 s36, s2, 18
    s_mul_i32 s34, s36, 28672
    s_add_u32 s34, s34, {OFF_WQB:#x}
    s_lshl_b32 s35, s36, 7
    s_add_u32 s35, s35, {OFF_CSB:#x}
    s_mov_b64 s[4:5], s[28:29]
    s_mov_b32 s6, {448*2688}
    s_mov_b32 s32, 2688
    s_mul_i32 s37, s36, 43
    s_lshr_b32 s37, s37, 7
    s_mul_i32 s38, s37, 3
    s_sub_u32 s38, s36, s38
    s_mul_i32 s33, s37, 56
    s_mul_i32 s38, s38, 896
    s_add_u32 s33, s33, s38
L_prep_qkv_go:
    s_lshl_b32 s36, s32, 2
    v_mul_lo_u32 v6, v4, s36
    v_lshl_add_u32 v6, v3, 1, v6
    v_add_u32 v6, s33, v6
    s_mul_i32 s37, s32, 112
    s_mul_i32 s37, s37, s12
    """)
    for i in range(7):
        for j in range(8):
            r = (j & 3) + 8 * (j >> 2) + 16 * i
            st = 40 + (j & 1)
            k(f"""
            s_mul_i32 s{st}, s32, {r}
            s_add_u32 s{st}, s{st}, s37
            buffer_load_ushort v{64 + 8*i + j}, v6, s[4:7], s{st} offen
            """)
    k("""
    s_mul_i32 s38, s12, 7168
    s_add_u32 s38, s38, s34
    s_add_u32 s39, s38, 4096
    v_mov_b32 v8, 0
    v_mov_b32 v9, 0
    s_waitcnt vmcnt(0)
    """)
    for i in range(28):
        k(f"v_lshl_or_b32 v{16+i}, v{65+2*i}, 16, v{64+2*i}")
    for i in range(7):
        k(f"buffer_store_dwordx4 v[{16+4*i}:{19+4*i}], v5, s[8:11], s{38 + i//4} offen offset:{(i%4)*1024}")
    for i in range(28):
        k(f"""
        v_lshlrev_b32 v10, 16, v{16+i}
        v_and_b32 v11, 0xffff0000, v{16+i}
        v_add_f32 v8, v8, v10
        v_add_f32 v9, v9, v11
        """)
    k("""
    v_add_f32 v8, v8, v9
    v_lshlrev_b32 v10, 2, v0
    ds_write_b32 v10, v8
    s_waitcnt lgkmcnt(0)
    s_barrier
    s_cmp_lg_u32 s12, 0
    s_cbranch_scc1 L_prep_end
    v_lshlrev_b32 v10, 2, v3
    """)
    for q in range(8):
        k(f"ds_read_b32 v{16+q}, v10 offset:{q*128}")
    k("s_waitcnt lgkmcnt(0)")
    for q in range(1, 8):
        k(f"v_add_f32 v16, v16, v{16+q}")
    k("""
    buffer_store_dword v16, v10, s[8:11], s35 offen
    s_branch L_prep_end
    """)
    k(f"""
L_prep_wo:
    s_sub_u32 s36, s2, 66
    s_mov_b64 s[4:5], s[24:25]
    s_mov_b32 s34, {OFF_WOA:#x}
    s_cmp_lt_u32 s36, 14
    s_cbranch_scc1 L_prep_wo2
    s_sub_u32 s36, s36, 14
    s_mov_b64 s[4:5], s[30:31]
    s_mov_b32 s34, {OFF_WOB:#x}
L_prep_wo2:
    s_mov_b32 s6, {448*896}
    s_lshl_b32 s37, s36, 15
    s_add_u32 s34, s34, s37
    s_lshl_b32 s33, s36, 6
    v_mul_u32_u24 v6, {4*896}, v4
    v_lshl_add_u32 v6, v3, 1, v6
    v_add_u32 v6, s33, v6
    v_lshl_or_b32 v7, v4, 31, v6
    s_mul_i32 s37, s12, {112*896}
    """)
    for i in range(8):
        for j in range(8):
            r = 28 * (i >> 1) + 16 * (i & 1) + (j & 3) + 8 * (j >> 2)
            st = 40 + (j & 1)
            vo = 7 if ((i & 1) and j >= 4) else 6
            k(f"""
            s_add_u32 s{st}, s37, {r*896}
            buffer_load_ushort v{64 + 8*i + j}, v{vo}, s[4:7], s{st} offen
            """)
    k("""
    s_lshl_b32 s38, s12, 13
    s_add_u32 s38, s38, s34
    s_add_u32 s39, s38, 4096
    s_waitcnt vmcnt(0)
    """)
    for i in range(32):
        k(f"v_lshl_or_b32 v{16+i}, v{65+2*i}, 16, v{64+2*i}")
    for i in range(8):
        k(f"buffer_store_dwordx4 v[{16+4*i}:{19+4*i}], v5, s[8:11], s{38 + i//4} offen offset:{(i%4)*1024}")
    k("s_branch L_prep_end")
    k(f"""
L_prep_x:
    s_sub_u32 s36, s2, 94
    s_mov_b64 s[4:5], s[16:17]
    s_mov_b32 s6, {2048*896}
    s_lshl_b32 s33, s36, 5
    v_add_u32 v12, s33, v3
    v_mul_u32_u24 v6, 896, v12
    v_lshl_add_u32 v6, v4, 3, v6
    s_mul_i32 s37, s12, 224
    """)
    for i in range(7):
        k(f"""
        buffer_load_dwordx2 v[{16+4*i}:{17+4*i}], v6, s[4:7], s37 offen offset:{32*i}
        buffer_load_dwordx2 v[{18+4*i}:{19+4*i}], v6, s[4:7], s37 offen offset:{32*i+16}
        """)
    k(f"""
    s_mul_i32 s38, s36, 28672
    s_mul_i32 s39, s12, 7168
    s_add_u32 s38, s38, s39
    s_add_u32 s38, s38, {OFF_XF:#x}
    s_add_u32 s39, s38, 4096
    v_mov_b32 v8, 0
    v_mov_b32 v9, 0
    s_waitcnt vmcnt(0)
    """)
    for i in range(7):
        k(f"buffer_store_dwordx4 v[{16+4*i}:{19+4*i}], v5, s[8:11], s{38 + i//4} offen offset:{(i%4)*1024}")
    for i in range(28):
        k(f"""
        v_lshlrev_b32 v10, 16, v{16+i}
        v_and_b32 v11, 0xffff0000, v{16+i}
        v_add_f32 v8, v8, v10
        v_fmac_f32 v9, v10, v10
        v_add_f32 v8, v8, v11
        v_fmac_f32 v9, v11, v11
        """)
    k(f"""
    v_mov_b32 v10, v8
    v_mov_b32 v11, v9
    v_permlane32_swap_b32 v8, v10
    v_permlane32_swap_b32 v9, v11
    v_add_f32 v8, v8, v10
    v_add_f32 v9, v9, v11
    v_lshlrev_b32 v13, 7, v12
    s_lshl_b32 s38, s12, 3
    s_add_u32 s38, s38, {OFF_STATS:#x}
    v_mov_b32 v10, 0
    v_mov_b32 v11, 0
    buffer_store_dwordx2 v[8:9], v13, s[8:11], s38 offen
    buffer_store_dwordx2 v[10:11], v13, s[8:11], s38 offen offset:32
    buffer_store_dwordx2 v[10:11], v13, s[8:11], s38 offen offset:64
    buffer_store_dwordx2 v[10:11], v13, s[8:11], s38 offen offset:96
L_prep_end:
    s_endpgm
    """)
    return k, dict(grid=158, block=256, lds=1024)
```

```python
OFF_WQA = 0x000000
OFF_WOA = 0x080000
OFF_WQB = 0x100000
OFF_WOB = 0x280000
OFF_CSA = 0x300000
OFF_CSB = 0x301000
OFF_STATS = 0x310000
OFF_XF = 0x400000
OFF_QF = 0x800000
OFF_KV = 0xA00000
OFF_OF = 0xE00000
WS_BYTES = 0x10000000
```

```python
import sys
from asmgen import *
from layout import *
import k_prep, k_gemm

HEADER = open('interleave_layers__grouped_kv_mqa__sliding_block__prompt.s.ref').read().split('; Override launch geometry')[0]

def assemble(kernels, order, path):
    out = [HEADER]
    info = {k.name: i for k, i in kernels}
    for name in order:
        i = info[name]
        out.append(f"; @launch kernel={name} grid=({i['grid']},1,1) block=({i['block']},1,1) lds={i['lds']}\n")
    out.append('.amdgcn_target "amdgcn-amd-amdhsa--gfx950"\n')
    for k, i in kernels:
        errs = k.check_backedges()
        for e in errs: print("HAZARD", e)
        assert not errs
        v, s, a = k.max_regs()
        assert a <= i.get('agpr', 0), (k.name, a)
        out.append(f".text\n.globl {k.name}\n.p2align 8\n.type {k.name},@function\n{k.name}:\n")
        out.append(k.text())
        out.append(descriptor(k.name, v, max(s, 16), i.get('agpr', 0)))
        print(f"{k.name}: vgpr={v} sgpr={s} agpr={a} ninstr={sum(1 for x in k.ins if x.mn)}")
    open(path, 'w').write(''.join(out))

if __name__ == '__main__':
    ks = [k_prep.gen_prep(), k_gemm.gen_qkvA(), k_gemm.gen_qkvB(),
          k_gemm.gen_proj('projA_kernel', OFF_WOA, False), k_gemm.gen_proj('projB_kernel', OFF_WOB, False),
          k_gemm.gen_proj('projF_kernel', OFF_WOB, True)]
    order = ['prep_kernel', 'qkvA_kernel']
    try:
        import k_attn
        ks += [k_attn.gen_attnA(), k_attn.gen_attnB()]
        order = ['prep_kernel', 'qkvA_kernel', 'attnA_kernel', 'projA_kernel', 'qkvB_kernel', 'attnB_kernel', 'projB_kernel',
                 'qkvA_kernel', 'attnA_kernel', 'projA_kernel', 'qkvB_kernel', 'attnB_kernel', 'projF_kernel']
    except ImportError:
        order = ['prep_kernel', 'qkvA_kernel', 'qkvB_kernel']
    path = sys.argv[1] if len(sys.argv) > 1 else 'interleave_layers__grouped_kv_mqa__sliding_block__prompt.s'
    assemble(ks, order, path)
```
